```python
import torch

def _softmax(x, axis=-1):
    return torch.softmax(x, dim=axis)
def _gelu(x):
    return torch.nn.functional.gelu(x, approximate="tanh")
def _silu(x):
    return torch.nn.functional.silu(x)
def _sigmoid(x):
    return torch.sigmoid(x)
def _layernorm(x, axis=-1, eps=1e-5):
    m = x.mean(dim=axis, keepdim=True)
    v = x.var(dim=axis, keepdim=True, unbiased=False)
    return (x - m) / torch.sqrt(v + eps)
def _scatter_add(tgt, idx, src, axis=0):
    return tgt.clone().index_add_(axis, idx, src)
def _segment_sum(src, seg, n):
    out = torch.zeros((n,) + src.shape[1:], dtype=src.dtype)
    return out.index_add_(0, seg, src)
def _pad(x, pw):
    flat = tuple(v for pair in reversed(pw) for v in pair)
    return torch.nn.functional.pad(x, flat)

kernel_name = 'concat_heads__mha_block_cached__gqa_block_cached__decode'

def setup_inputs():

    _w = (lambda a: (lambda t: t.to(torch.bfloat16) if t.is_floating_point() else t)(torch.as_tensor(a)))
    def _A_setup():
        B, Sq, D = 8, 1, 512
        H, Sk, Dh = 32, 4096, 128
        return {
            "x": _w((lambda *s: torch.randn(*s, dtype=torch.bfloat16) * 0.8)(B, Sq, D)),
            "k_cache": _w((lambda *s: torch.randn(*s, dtype=torch.bfloat16) * 0.8)(B, H, Sk, Dh)),
            "v_cache": _w((lambda *s: torch.randn(*s, dtype=torch.bfloat16) * 0.05)(B, H, Sk, Dh)),
            "wq": _w((lambda *s: torch.randn(*s, dtype=torch.bfloat16) * 0.8)(D, H * Dh) * (D ** -0.5)),
            "wo": _w((lambda *s: torch.randn(*s, dtype=torch.bfloat16) * 0.05)(H * Dh, D) * ((H * Dh) ** -0.5)),
        }
    _A_in = _A_setup()

    def _B_setup():
        B, Sq, D = 8, 1, 512
        Hq, Hkv, Sk, Dh = 32, 8, 4096, 128
        assert Hq % Hkv == 0, (Hq, Hkv)
        return {
            "x": _w((lambda *s: torch.randn(*s, dtype=torch.bfloat16) * 0.8)(B, Sq, D)),
            "k_cache": _w((lambda *s: torch.randn(*s, dtype=torch.bfloat16) * 0.8)(B, Hkv, Sk, Dh)),
            "v_cache": _w((lambda *s: torch.randn(*s, dtype=torch.bfloat16) * 0.05)(B, Hkv, Sk, Dh)),
            "wq": _w((lambda *s: torch.randn(*s, dtype=torch.bfloat16) * 0.8)(D, Hq * Dh) * (D ** -0.5)),
            "wo": _w((lambda *s: torch.randn(*s, dtype=torch.bfloat16) * 0.05)(Hq * Dh, D) * ((Hq * Dh) ** -0.5)),
        }
    _B_in = _B_setup()

    return {
        "A_x": _A_in["x"],
        "A_k_cache": _A_in["k_cache"],
        "A_v_cache": _A_in["v_cache"],
        "A_wq": _A_in["wq"],
        "A_wo": _A_in["wo"],
        "B_x": _B_in["x"],
        "B_k_cache": _B_in["k_cache"],
        "B_v_cache": _B_in["v_cache"],
        "B_wq": _B_in["wq"],
        "B_wo": _B_in["wo"],
    }

def reference(A_x, A_k_cache, A_v_cache, A_wq, A_wo, B_x, B_k_cache, B_v_cache, B_wq, B_wo):
    def _A_ref(x, k_cache, v_cache, wq, wo):
        B, Sq, D = x.shape
        H, Dh = 32, 128
        q = (lambda x, *d: x.permute(*d))((x @ wq).reshape(B, Sq, H, Dh), 0, 2, 1, 3)
        scores = torch.einsum("bhqd,bhkd->bhqk", q, k_cache) * (Dh ** -0.5)
        p = _softmax(scores, axis=-1)
        o = torch.einsum("bhqk,bhkd->bhqd", p, v_cache)
        return (lambda x, *d: x.permute(*d))(o, 0, 2, 1, 3).reshape(B, Sq, H * Dh) @ wo

    def _B_ref(x, k_cache, v_cache, wq, wo):
        B, Sq, D = x.shape
        Hq, Dh = 32, 128
        Hkv = k_cache.shape[1]
        rep = Hq // Hkv
        q = (lambda x, *d: x.permute(*d))((x @ wq).reshape(B, Sq, Hq, Dh), 0, 2, 1, 3)
        k = (lambda x, n, axis: torch.repeat_interleave(x, n, dim=axis))(k_cache, rep, axis=1)
        v = (lambda x, n, axis: torch.repeat_interleave(x, n, dim=axis))(v_cache, rep, axis=1)
        scores = torch.einsum("bhqd,bhkd->bhqk", q, k) * (Dh ** -0.5)
        p = _softmax(scores, axis=-1)
        o = torch.einsum("bhqk,bhkd->bhqd", p, v)
        return (lambda x, *d: x.permute(*d))(o, 0, 2, 1, 3).reshape(B, Sq, Hq * Dh) @ wo

    a = _A_ref(A_x, A_k_cache, A_v_cache, A_wq, A_wo)
    b = _B_ref(B_x, B_k_cache, B_v_cache, B_wq, B_wo)
    return torch.concatenate([a, b], axis=-1)
```

```python
class Asm:
    def __init__(self):
        self.lines = []
        self.uid = 0
    def e(self, s):
        self.lines.append("    " + s)
    def c(self, s):
        self.lines.append("    ; " + s)
    def label(self, s):
        self.lines.append(s + ":")
    def raw(self, s):
        self.lines.append(s)
    def newlabel(self, p="L"):
        self.uid += 1
        return f"{p}_{self.uid}"
    def nop(self, n):
        while n > 0:
            k = min(n, 16)
            self.e(f"s_nop {k-1}")
            n -= k
    def text(self):
        return "\n".join(self.lines) + "\n"

def v(i, n=1):
    return f"v{i}" if n == 1 else f"v[{i}:{i+n-1}]"
def s(i, n=1):
    return f"s{i}" if n == 1 else f"s[{i}:{i+n-1}]"

class Regs:
    def __init__(self, start, limit):
        self.p = start
        self.limit = limit
        self.names = {}
    def alloc(self, name, n=1, align=1):
        self.p = (self.p + align - 1) // align * align
        r = self.p
        self.p += n
        assert self.p <= self.limit, (name, self.p, self.limit)
        self.names[name] = r
        return r

HEADER = """; Kernarg layout for this problem (104 bytes, ptrs only, base s[0:1]):
"""

def kernel_begin(a, name):
    a.raw(f".globl {name}")
    a.raw(".p2align 8")
    a.raw(f".type {name},@function")
    a.label(name)

def kernel_desc(name, vgpr, sgpr, accum=None):
    if accum is None:
        accum = (vgpr + 3) // 4 * 4
    return f""".section .rodata,"a"
.p2align 6
.amdhsa_kernel {name}
  .amdhsa_next_free_vgpr {vgpr}
  .amdhsa_next_free_sgpr {sgpr}
  .amdhsa_accum_offset {accum}
  .amdhsa_group_segment_fixed_size 0
  .amdhsa_kernarg_size 104
  .amdhsa_user_sgpr_count 2
  .amdhsa_user_sgpr_kernarg_segment_ptr 1
  .amdhsa_system_sgpr_workgroup_id_x 1
.end_amdhsa_kernel
"""
```

```python
import sys, math, struct
from asmlib import *

R = int(sys.argv[2]) if len(sys.argv) > 2 else 6
A1 = int(sys.argv[3]) if len(sys.argv) > 3 else 4
NT = " nt"

def f32bits(x):
    return struct.unpack("<I", struct.pack("<f", x))[0]
CSCALE = f32bits(128 ** -0.5 * math.log2(math.e))

WS_QA, WS_QB, WS_PB, WS_PA, WS_YA, WS_YB = 0, 0x10000, 0x20000, 0x120000, 0x200000, 0x280000

S_AX, S_AK, S_AV, S_AWQ, S_AWO, S_BX, S_BK, S_BV, S_BWQ, S_BWO, S_OUT, S_DBG, S_WS = [16 + 2 * i for i in range(13)]
S_X, S_B, S_J, S_H, S_BH, S_W = 3, 4, 5, 6, 7, 8

def prologue(a, done):
    a.e("s_cmp_ge_u32 s2, 256")
    a.e(f"s_cbranch_scc1 {done}")
    a.e("s_load_dwordx16 s[16:31], s[0:1], 0")
    a.e("s_load_dwordx8 s[32:39], s[0:1], 64")
    a.e("s_load_dwordx2 s[40:41], s[0:1], 96")
    a.e(f"s_and_b32 s{S_X}, s2, 7")
    a.e(f"s_lshr_b32 s{S_B}, s2, 5")
    a.e(f"s_bfe_u32 s{S_J}, s2, 0x20003")
    a.e(f"s_lshl_b32 s{S_H}, s{S_X}, 2")
    a.e(f"s_add_u32 s{S_H}, s{S_H}, s{S_J}")
    a.e(f"s_lshl_b32 s{S_BH}, s{S_B}, 5")
    a.e(f"s_add_u32 s{S_BH}, s{S_BH}, s{S_H}")
    a.e("v_lshrrev_b32 v1, 6, v0")
    a.e("v_and_b32 v0, 63, v0")
    a.e(f"v_readfirstlane_b32 s{S_W}, v1")
    a.e("s_waitcnt lgkmcnt(0)")

def srd(a, d, base, size, off_sgpr=None):
    if off_sgpr is None:
        a.e(f"s_mov_b32 s{d}, s{base}")
        a.e(f"s_mov_b32 s{d+1}, s{base+1}")
    else:
        a.e(f"s_add_u32 s{d}, s{base}, s{off_sgpr}")
        a.e(f"s_addc_u32 s{d+1}, s{base+1}, 0")
    a.e(f"s_mov_b32 s{d+2}, {size}")
    a.e(f"s_mov_b32 s{d+3}, 0x20000")

def xrow_reduce(a, op, t, t2):
    a.e(f"v_mov_b32 v{t2}, v{t}")
    a.nop(2)
    a.e(f"v_permlane16_swap_b32 v{t}, v{t2}")
    a.nop(1)
    a.e(f"{op} v{t}, v{t}, v{t2}")
    a.e(f"v_mov_b32 v{t2}, v{t}")
    a.nop(2)
    a.e(f"v_permlane32_swap_b32 v{t}, v{t2}")
    a.nop(1)
    a.e(f"{op} v{t}, v{t}, v{t2}")

DPPALL = "row_mask:0xf bank_mask:0xf"

def gen_qproj(a):
    name = "qproj_kernel"
    kernel_begin(a, name)
    prologue(a, "QP_DONE")
    r = Regs(2, 256)
    vS = r.alloc("s"); vN = r.alloc("n"); vM0 = r.alloc("m0"); vM1 = r.alloc("m1"); vT = r.alloc("t")
    vXo = r.alloc("xo"); vWo = r.alloc("wo"); vXs = r.alloc("xs", 2)
    vLw = r.alloc("lw"); vLr = r.alloc("lr")
    vC = r.alloc("c", 8, 4)
    vX = r.alloc("X", 64, 2)
    vW = r.alloc("W", 128, 4)
    a.e(f"v_lshrrev_b32 v{vS}, 4, v0")
    a.e(f"v_and_b32 v{vN}, 15, v0")
    a.e(f"v_and_b32 v{vT}, 3, v0")
    a.e(f"v_mov_b32 v{vM0}, 0")
    a.e(f"v_mov_b32 v{vM1}, 0")
    a.e("s_mov_b32 s9, 0x10000")
    for val, reg, k in ((1, vM0, 0), ("s9", vM0, 1), (1, vM1, 2), ("s9", vM1, 3)):
        a.e(f"v_cmp_eq_u32 vcc, {k}, v{vT}")
        a.e(f"v_mov_b32 v{vXo}, {val}")
        a.nop(1)
        a.e(f"v_cndmask_b32 v{reg}, v{reg}, v{vXo}, vcc")
    a.e(f"v_lshlrev_b32 v{vXo}, 2, v{vN}")
    a.e(f"v_add_u32 v{vXo}, v{vXo}, v{vS}")
    a.e(f"v_lshlrev_b32 v{vXo}, 1, v{vXo}")
    a.e(f"s_lshl_b32 s10, s{S_B}, 10")
    a.e(f"s_lshl_b32 s11, s{S_W}, 8")
    a.e("s_add_u32 s10, s10, s11")
    a.e(f"v_lshlrev_b32 v{vWo}, 13, v{vS}")
    a.e(f"v_lshl_add_u32 v{vWo}, v{vN}, 4, v{vWo}")
    a.e(f"v_lshlrev_b32 v{vLr}, 5, v{vN}")
    a.e(f"s_lshl_b32 s11, s{S_W}, 9")
    a.e(f"v_add_u32 v{vLw}, s11, v{vLr}")
    srd(a, 52, S_WS, "0x300000")
    for br in range(2):
        srd(a, 44, S_BX if br else S_AX, 8192)
        srd(a, 48, S_BWQ if br else S_AWQ, "0x400000")
        a.e(f"buffer_load_ushort v{vXs}, v{vXo}, s[44:47], s10 offen")
        a.e(f"buffer_load_ushort v{vXs+1}, v{vXo}, s[44:47], s10 offen offset:128")
        a.e(f"s_lshl_b32 s12, s{S_W}, 20")
        a.e(f"s_lshl_b32 s13, s{S_H}, 8")
        a.e("s_add_u32 s12, s12, s13")
        for t in range(32):
            a.e(f"buffer_load_dwordx4 {v(vW+4*t,4)}, v{vWo}, s[48:51], s12 offen")
            if t < 31:
                a.e("s_add_u32 s12, s12, 0x8000")
        for i in range(8):
            a.e(f"v_mov_b32 v{vC+i}, 0")
        a.e("s_waitcnt vmcnt(32)")
        for t in range(32):
            a.e(f"v_mul_u32_u24_dpp v{vX+2*t}, v{vXs+t//16}, v{vM0} row_newbcast:{t%16} {DPPALL}")
            a.e(f"v_mul_u32_u24_dpp v{vX+2*t+1}, v{vXs+t//16}, v{vM1} row_newbcast:{t%16} {DPPALL}")
        for t in range(32):
            a.e(f"s_waitcnt vmcnt({31-t})")
            a.e(f"v_mfma_f32_16x16x16_bf16 {v(vC,4)}, {v(vX+2*t,2)}, {v(vW+4*t,2)}, {v(vC,4)}")
            a.e(f"v_mfma_f32_16x16x16_bf16 {v(vC+4,4)}, {v(vX+2*t,2)}, {v(vW+4*t+2,2)}, {v(vC+4,4)}")
        a.nop(8)
        if br:
            a.e("s_barrier")
        a.e("s_mov_b64 exec, 0xffff")
        a.e(f"ds_write_b128 v{vLw}, {v(vC,4)}")
        a.e(f"ds_write_b128 v{vLw}, {v(vC+4,4)} offset:16")
        a.e("s_mov_b64 exec, -1")
        a.e("s_waitcnt lgkmcnt(0)")
        a.e("s_barrier")
        for g in range(4):
            a.e(f"ds_read_b128 {v(vW+8*g,4)}, v{vLr} offset:{512*g}")
            a.e(f"ds_read_b128 {v(vW+8*g+4,4)}, v{vLr} offset:{512*g+16}")
        a.e("s_waitcnt lgkmcnt(0)")
        for e in range(8):
            a.e(f"v_add_f32 v{vW+e}, v{vW+e}, v{vW+8+e}")
            a.e(f"v_add_f32 v{vW+16+e}, v{vW+16+e}, v{vW+24+e}")
        for e in range(8):
            a.e(f"v_add_f32 v{vW+e}, v{vW+e}, v{vW+16+e}")
        for e in range(4):
            a.e(f"v_cvt_pk_bf16_f32 v{vX+e}, v{vW+2*e}, v{vW+2*e+1}")
        a.e(f"v_lshlrev_b32 v{vT}, 4, v{vN}")
        a.e(f"s_lshl_b32 s12, s{S_BH}, 8")
        a.e(f"s_add_u32 s12, s12, {WS_QB if br else WS_QA}")
        a.e("s_mov_b64 exec, 0xffff")
        a.e(f"buffer_store_dwordx4 {v(vX,4)}, v{vT}, s[52:55], s12 offen")
        a.e("s_mov_b64 exec, -1")
        a.e("s_waitcnt vmcnt(0)")
    a.label("QP_DONE")
    a.e("s_endpgm")
    return kernel_desc(name, r.p, 64)

def gen_stream(a):
    name = "stream_kernel"
    kernel_begin(a, name)
    prologue(a, "ST_DONE")
    r = Regs(2, 256)
    vOff = r.alloc("off"); vM0 = r.alloc("m0"); vM1 = r.alloc("m1"); vC = r.alloc("c"); vBP = r.alloc("bp")
    vT = r.alloc("t"); vT2 = r.alloc("t2"); vT3 = r.alloc("t3")
    vMa = r.alloc("ma"); vMsa = r.alloc("msa"); vLa = r.alloc("la")
    vMb = r.alloc("mb"); vMsb = r.alloc("msb"); vLb = r.alloc("lb")
    vA = r.alloc("a", 4); vZ = r.alloc("z", 4); vP = r.alloc("p", 4)
    vX = r.alloc("x", 8, 2)
    vQa = r.alloc("qa", 4, 4); vQb = r.alloc("qb", 16, 4)
    vCa = r.alloc("ca", 8, 4); vCb = r.alloc("cb", 8, 4)
    vR = r.alloc("ring", 128, 4)
    S_KC, S_VC, S_WSR = 44, 48, 52
    S_KAB, S_VAB, S_KBB, S_VBB = 56, 58, 60, 62
    S_SB, S_O = 9, 64
    S_T, S_T2 = 10, 11
    a.e(f"s_lshl_b32 s{S_T}, s{S_BH}, 20")
    a.e(f"s_add_u32 s{S_KAB}, s{S_AK}, s{S_T}"); a.e(f"s_addc_u32 s{S_KAB+1}, s{S_AK+1}, 0")
    a.e(f"s_add_u32 s{S_VAB}, s{S_AV}, s{S_T}"); a.e(f"s_addc_u32 s{S_VAB+1}, s{S_AV+1}, 0")
    a.e(f"s_lshl_b32 s{S_T}, s{S_B}, 3"); a.e(f"s_add_u32 s{S_T}, s{S_T}, s{S_X}")
    a.e(f"s_lshl_b32 s{S_T}, s{S_T}, 20"); a.e(f"s_lshl_b32 s{S_T2}, s{S_J}, 18"); a.e(f"s_add_u32 s{S_T}, s{S_T}, s{S_T2}")
    a.e(f"s_add_u32 s{S_KBB}, s{S_BK}, s{S_T}"); a.e(f"s_addc_u32 s{S_KBB+1}, s{S_BK+1}, 0")
    a.e(f"s_add_u32 s{S_VBB}, s{S_BV}, s{S_T}"); a.e(f"s_addc_u32 s{S_VBB+1}, s{S_BV+1}, 0")
    a.e(f"s_mov_b32 s{S_KC+3}, 0x20000"); a.e(f"s_mov_b32 s{S_VC+3}, 0x20000")
    srd(a, S_WSR, S_WS, "0x300000")
    a.e(f"s_lshl_b32 s{S_T}, s{S_W}, 12")
    a.e(f"v_lshlrev_b32 v{vOff}, 4, v0")
    a.e(f"v_add_u32 v{vOff}, s{S_T}, v{vOff}")

    def set_issue():
        a.e(f"s_sub_u32 s{S_T}, s{S_SB}, {A1}")
        a.e(f"s_cmp_lt_u32 s{S_T}, 4")
        a.e(f"s_cselect_b64 s[{S_KC}:{S_KC+1}], s[{S_KBB}:{S_KBB+1}], s[{S_KAB}:{S_KAB+1}]")
        a.e(f"s_cselect_b64 s[{S_VC}:{S_VC+1}], s[{S_VBB}:{S_VBB+1}], s[{S_VAB}:{S_VAB+1}]")
        a.e(f"s_cselect_b32 s{S_KC+2}, 0x40000, 0x100000") if False else None
        a.e(f"s_mov_b32 s{S_T2}, 0x100000")
        a.e(f"s_cselect_b32 s{S_KC+2}, 0x40000, s{S_T2}")
        a.e(f"s_mov_b32 s{S_VC+2}, s{S_KC+2}")
        a.e(f"s_cselect_b32 s{S_T}, s{S_T}, s{S_SB}")
        a.e(f"s_sub_u32 s{S_T2}, s{S_SB}, 4")
        a.e(f"s_cmp_ge_u32 s{S_SB}, {A1+4}")
        a.e(f"s_cselect_b32 s{S_T}, s{S_T2}, s{S_T}")
        a.e(f"s_lshl_b32 s{S_O}, s{S_T}, 16")
        for u in range(1, 4):
            a.e(f"s_add_u32 s{S_O+u}, s{S_O}, {16384*u}")
        a.e(f"s_add_u32 s{S_SB}, s{S_SB}, 1")

    def slotK(u, t): return vR + (u * 8 + t) * 4
    def slotV(u, t): return vR + (u * 8 + 4 + t) * 4
    def issue(u, t, isv, wait=True):
        if wait:
            a.e(f"s_waitcnt vmcnt({R-1})")
        sl = slotV(u, t) if isv else slotK(u, t)
        sr = S_VC if isv else S_KC
        off = f" offset:{1024*t}" if t else ""
        a.e(f"buffer_load_dwordx4 {v(sl,4)}, v{vOff}, s[{sr}:{sr+3}], s{S_O+u} offen{off}{NT}")

    a.e(f"v_and_b32 v{vT}, 15, v0")
    a.e(f"v_lshlrev_b32 v{vT}, 4, v{vT}")
    a.e(f"s_lshl_b32 s{S_T}, s{S_BH}, 8")
    a.e(f"buffer_load_dwordx4 {v(vQa,4)}, v{vT}, s[{S_WSR}:{S_WSR+3}], s{S_T} offen")
    a.e(f"s_lshl_b32 s{S_T}, s{S_B}, 5"); a.e(f"s_lshl_b32 s{S_T2}, s{S_X}, 2"); a.e(f"s_add_u32 s{S_T}, s{S_T}, s{S_T2}")
    a.e(f"s_lshl_b32 s{S_T}, s{S_T}, 8"); a.e(f"s_add_u32 s{S_T}, s{S_T}, {WS_QB}")
    for hh in range(4):
        a.e(f"buffer_load_dwordx4 {v(vQb+4*hh,4)}, v{vT}, s[{S_WSR}:{S_WSR+3}], s{S_T} offen offset:{256*hh}")
    a.e(f"s_mov_b32 s{S_SB}, 0")
    set_issue()
    n = 0
    for u in range(4):
        for isv in (0, 1):
            for t in range(4):
                issue(u, t, isv, wait=(n >= R))
                n += 1
    a.e(f"v_and_b32 v{vT}, 3, v0")
    a.e(f"v_mov_b32 v{vM0}, 0"); a.e(f"v_mov_b32 v{vM1}, 0")
    for val, reg, k in (("0xffff", vM0, 0), ("0xffff0000", vM0, 1), ("0xffff", vM1, 2), ("0xffff0000", vM1, 3)):
        a.e(f"v_cmp_eq_u32 vcc, {k}, v{vT}")
        a.e(f"v_mov_b32 v{vT2}, {val}")
        a.nop(1)
        a.e(f"v_cndmask_b32 v{reg}, v{reg}, v{vT2}, vcc")
    a.e(f"v_mov_b32 v{vC}, {hex(CSCALE)}")
    a.e(f"v_lshrrev_b32 v{vBP}, 4, v0")
    a.e(f"v_lshlrev_b32 v{vBP}, 4, v{vBP}")
    for rg in (vMa, vMsa, vMb, vMsb):
        a.e(f"v_mov_b32 v{rg}, 0xff800000")
    a.e(f"v_mov_b32 v{vLa}, 0"); a.e(f"v_mov_b32 v{vLb}, 0")
    for i in range(8):
        a.e(f"v_mov_b32 v{vCa+i}, 0"); a.e(f"v_mov_b32 v{vCb+i}, 0")

    slow = []
    def reduce4(z):
        return [
            f"v_add_f32_dpp v{vA}, v{vA}, v{vA} row_ror:8 row_mask:0xf bank_mask:0x3",
            f"v_add_f32_dpp v{vA+1}, v{vA+1}, v{vA+1} row_ror:8 row_mask:0xf bank_mask:0x3",
            f"v_add_f32_dpp v{vA}, v{vA+2}, v{vA+2} row_ror:8 row_mask:0xf bank_mask:0xc",
            f"v_add_f32_dpp v{vA+1}, v{vA+3}, v{vA+3} row_ror:8 row_mask:0xf bank_mask:0xc",
            "s_nop 1",
            f"v_add_f32_dpp v{z}, v{vA}, v{vA} row_half_mirror row_mask:0xf bank_mask:0x5",
            f"v_add_f32_dpp v{z}, v{vA+1}, v{vA+1} row_half_mirror row_mask:0xf bank_mask:0xa",
            "s_nop 1",
            f"v_add_f32_dpp v{z}, v{z}, v{z} quad_perm:[1,0,3,2] {DPPALL}",
            "s_nop 1",
            f"v_add_f32_dpp v{z}, v{z}, v{z} quad_perm:[2,3,0,1] {DPPALL}",
        ]

    def mha_block(u):
        for k in range(4):
            for t in range(4):
                src2 = "0" if k == 0 else f"v{vA+t}"
                a.e(f"v_dot2_f32_bf16 v{vA+t}, v{slotK(u,t)+k}, v{vQa+k}, {src2}")
        issue(u, 0, 0)
        a.nop(1)
        red = reduce4(vZ)
        for x in red[:5]: a.e(x)
        issue(u, 1, 0)
        for x in red[5:]: a.e(x)
        ls, lb = a.newlabel("SLOWA"), a.newlabel("BACKA")
        a.e(f"v_cmp_gt_f32 vcc, v{vZ}, v{vMa}")
        a.e(f"s_cbranch_vccnz {ls}")
        a.label(lb)
        a.e(f"v_fma_f32 v{vP}, v{vZ}, v{vC}, -v{vMsa}")
        a.e(f"v_exp_f32 v{vP}, v{vP}")
        issue(u, 2, 0)
        a.e(f"v_add_f32 v{vLa}, v{vLa}, v{vP}")
        a.e(f"v_cvt_pk_bf16_f32 v{vP+1}, v{vP}, v{vP}")
        issue(u, 3, 0)
        for t in range(4):
            a.e(f"v_and_b32_dpp v{vX+2*t}, v{vP+1}, v{vM0} row_newbcast:{4*t} {DPPALL}")
            a.e(f"v_and_b32_dpp v{vX+2*t+1}, v{vP+1}, v{vM1} row_newbcast:{4*t} {DPPALL}")
        a.nop(1)
        for t in range(4):
            sl = slotV(u, t)
            a.e(f"v_mfma_f32_16x16x16_bf16 {v(vCa,4)}, {v(vX+2*t,2)}, {v(sl,2)}, {v(vCa,4)}")
            a.e(f"v_mfma_f32_16x16x16_bf16 {v(vCa+4,4)}, {v(vX+2*t,2)}, {v(sl+2,2)}, {v(vCa+4,4)}")
            issue(u, t, 1)
        def so():
            a.label(ls)
            a.e(f"v_max_f32_dpp v{vT}, v{vZ}, v{vZ} row_ror:4 {DPPALL}")
            a.nop(2)
            a.e(f"v_max_f32_dpp v{vT}, v{vT}, v{vT} row_ror:8 {DPPALL}")
            xrow_reduce(a, "v_max_f32", vT, vT2)
            a.e(f"v_max_f32 v{vMa}, v{vT}, v{vMa}")
            a.e(f"v_mul_f32 v{vT3}, v{vMa}, v{vC}")
            a.e(f"v_sub_f32 v{vT2}, v{vMsa}, v{vT3}")
            a.e(f"v_exp_f32 v{vT2}, v{vT2}")
            a.e(f"v_mov_b32 v{vMsa}, v{vT3}")
            a.e(f"v_mul_f32 v{vLa}, v{vLa}, v{vT2}")
            for i in range(8):
                a.e(f"v_mul_f32 v{vCa+i}, v{vCa+i}, v{vT2}")
            a.e(f"s_branch {lb}")
        slow.append(so)

    def gqa_block(u):
        for t in range(4):
            for k in range(4):
                for hh in range(4):
                    src2 = "0" if k == 0 else f"v{vA+hh}"
                    a.e(f"v_dot2_f32_bf16 v{vA+hh}, v{slotK(u,t)+k}, v{vQb+4*hh+k}, {src2}")
            issue(u, t, 0)
            a.nop(1)
            for x in reduce4(vZ + t): a.e(x)
        a.e(f"v_max3_f32 v{vT}, v{vZ}, v{vZ+1}, v{vZ+2}")
        a.e(f"v_max_f32 v{vT}, v{vT}, v{vZ+3}")
        ls, lb = a.newlabel("SLOWB"), a.newlabel("BACKB")
        a.e(f"v_cmp_gt_f32 vcc, v{vT}, v{vMb}")
        a.e(f"s_cbranch_vccnz {ls}")
        a.label(lb)
        for t in range(4):
            a.e(f"v_fma_f32 v{vP+t}, v{vZ+t}, v{vC}, -v{vMsb}")
        for t in range(4):
            a.e(f"v_exp_f32 v{vP+t}, v{vP+t}")
        a.nop(1)
        for t in range(4):
            a.e(f"v_add_f32 v{vLb}, v{vLb}, v{vP+t}")
            a.e(f"v_cvt_pk_bf16_f32 v{vP+t}, v{vP+t}, v{vP+t}")
        for t in range(4):
            a.e(f"v_and_b32 v{vX+2*t}, v{vP+t}, v{vM0}")
            a.e(f"v_and_b32 v{vX+2*t+1}, v{vP+t}, v{vM1}")
        a.nop(1)
        for t in range(4):
            sl = slotV(u, t)
            a.e(f"v_mfma_f32_16x16x16_bf16 {v(vCb,4)}, {v(vX+2*t,2)}, {v(sl,2)}, {v(vCb,4)}")
            a.e(f"v_mfma_f32_16x16x16_bf16 {v(vCb+4,4)}, {v(vX+2*t,2)}, {v(sl+2,2)}, {v(vCb+4,4)}")
            issue(u, t, 1)
        def so():
            a.label(ls)
            xrow_reduce(a, "v_max_f32", vT, vT2)
            a.e(f"v_max_f32 v{vMb}, v{vT}, v{vMb}")
            a.e(f"v_mul_f32 v{vT3}, v{vMb}, v{vC}")
            a.e(f"v_sub_f32 v{vT2}, v{vMsb}, v{vT3}")
            a.e(f"v_exp_f32 v{vT2}, v{vT2}")
            a.e(f"v_mov_b32 v{vMsb}, v{vT3}")
            a.e(f"ds_bpermute_b32 v{vT3}, v{vBP}, v{vT2}")
            a.e(f"v_mul_f32 v{vLb}, v{vLb}, v{vT2}")
            a.e("s_waitcnt lgkmcnt(0)")
            for i in range(8):
                a.e(f"v_mul_f32 v{vCb+i}, v{vCb+i}, v{vT3}")
            a.e(f"s_branch {lb}")
        slow.append(so)

    if A1 == 0:
        a.e("s_branch LOOP_B")
    a.label("LOOP_A")
    set_issue()
    for u in range(4):
        mha_block(u)
    a.e(f"s_cmp_eq_u32 s{S_SB}, 21")
    a.e("s_cbranch_scc1 FIN")
    a.e(f"s_cmp_lg_u32 s{S_SB}, {A1+1}")
    a.e("s_cbranch_scc1 LOOP_A")
    a.label("LOOP_B")
    set_issue()
    for u in range(4):
        gqa_block(u)
    a.e(f"s_cmp_lg_u32 s{S_SB}, {A1+5}")
    a.e("s_cbranch_scc1 LOOP_B")
    a.e("s_branch LOOP_A")
    for so in slow:
        so()
    a.label("FIN")
    a.e("s_waitcnt vmcnt(0)")
    a.e(f"v_add_f32_dpp v{vLa}, v{vLa}, v{vLa} row_ror:4 {DPPALL}")
    a.nop(2)
    a.e(f"v_add_f32_dpp v{vLa}, v{vLa}, v{vLa} row_ror:8 {DPPALL}")
    xrow_reduce(a, "v_add_f32", vLa, vT2)
    xrow_reduce(a, "v_add_f32", vLb, vT2)
    vLA = vA; vLB = vA + 1; vLM = vA + 2
    a.e(f"v_lshlrev_b32 v{vT}, 5, v0")
    a.e(f"s_lshl_b32 s{S_T}, s{S_W}, 11")
    a.e(f"v_add_u32 v{vLB}, s{S_T}, v{vT}")
    a.e(f"ds_write_b128 v{vLB}, {v(vCb,4)} offset:4096")
    a.e(f"ds_write_b128 v{vLB}, {v(vCb+4,4)} offset:4112")
    a.e(f"s_lshl_b32 s{S_T}, s{S_W}, 9")
    a.e(f"v_add_u32 v{vLA}, s{S_T}, v{vT}")
    a.e(f"s_lshl_b32 s{S_T}, s{S_W}, 3")
    a.e(f"v_lshlrev_b32 v{vLM}, 3, v0")
    a.e(f"v_add_u32 v{vLM}, s{S_T}, v{vLM}")
    a.e(f"v_mov_b32 v{vX}, v{vMsb}"); a.e(f"v_mov_b32 v{vX+1}, v{vLb}")
    a.e(f"v_mov_b32 v{vX+2}, v{vMsa}"); a.e(f"v_mov_b32 v{vX+3}, v{vLa}")
    a.e("s_mov_b64 exec, 0xffff")
    a.e(f"ds_write_b128 v{vLA}, {v(vCa,4)}")
    a.e(f"ds_write_b128 v{vLA}, {v(vCa+4,4)} offset:16")
    a.e("s_mov_b64 exec, 0x1111")
    a.e(f"ds_write_b64 v{vLM}, {v(vX,2)} offset:12288")
    a.e("s_mov_b64 exec, 1")
    a.e(f"ds_write_b64 v{vLM}, {v(vX+2,2)} offset:2048")
    a.e("s_mov_b64 exec, -1")
    a.e("s_waitcnt lgkmcnt(0)")
    a.e("s_barrier")
    vML = vR; vO = vR + 8; vAl = vR + 16; vAd = vR + 20; vSt = vR + 22
    def combine(o_base, o_stride, ml_base_v, ml_off, o_addr_v, ws_off_sgpr):
        a.e(f"ds_read_b128 {v(vML,4)}, v{ml_base_v} offset:{ml_off}")
        a.e(f"ds_read_b128 {v(vML+4,4)}, v{ml_base_v} offset:{ml_off+16}")
        for w in range(4):
            a.e(f"ds_read_b64 {v(vO+2*w,2)}, v{o_addr_v} offset:{o_base+o_stride*w}")
        a.e("s_waitcnt lgkmcnt(0)")
        a.e(f"v_max3_f32 v{vSt}, v{vML}, v{vML+2}, v{vML+4}")
        a.e(f"v_max_f32 v{vSt}, v{vSt}, v{vML+6}")
        for w in range(4):
            a.e(f"v_sub_f32 v{vAl+w}, v{vML+2*w}, v{vSt}")
        for w in range(4):
            a.e(f"v_exp_f32 v{vAl+w}, v{vAl+w}")
        a.nop(1)
        a.e(f"v_mul_f32 v{vSt+1}, v{vAl}, v{vML+1}")
        a.e(f"v_mul_f32 v{vAd}, v{vAl}, v{vO}")
        a.e(f"v_mul_f32 v{vAd+1}, v{vAl}, v{vO+1}")
        for w in range(1, 4):
            a.e(f"v_fmac_f32 v{vSt+1}, v{vAl+w}, v{vML+2*w+1}")
            a.e(f"v_fmac_f32 v{vAd}, v{vAl+w}, v{vO+2*w}")
            a.e(f"v_fmac_f32 v{vAd+1}, v{vAl+w}, v{vO+2*w+1}")
        a.e(f"v_lshlrev_b32 v{vT}, 3, v0")
        a.e(f"buffer_store_dwordx2 {v(vAd,2)}, v{vT}, s[{S_WSR}:{S_WSR+3}], s{ws_off_sgpr} offen")
        a.e("s_mov_b64 exec, 1")
        a.e(f"buffer_store_dwordx2 {v(vSt,2)}, v{vT}, s[{S_WSR}:{S_WSR+3}], s{ws_off_sgpr} offen offset:512")
        a.e("s_mov_b64 exec, -1")
        a.e("s_waitcnt vmcnt(0)")
    a.e(f"s_lshl_b32 s{S_T}, s{S_W}, 9")
    a.e(f"v_lshlrev_b32 v{vT2}, 3, v0")
    a.e(f"v_add_u32 v{vT3}, s{S_T}, v{vT2}")
    a.e(f"s_lshl_b32 s{S_T}, s{S_W}, 5")
    a.e(f"v_mov_b32 v{vZ}, s{S_T}")
    a.e(f"s_lshl_b32 s{S_T}, s{S_B}, 5"); a.e(f"s_lshl_b32 s{S_T2}, s{S_X}, 2"); a.e(f"s_add_u32 s{S_T}, s{S_T}, s{S_T2}")
    a.e(f"s_add_u32 s{S_T}, s{S_T}, s{S_W}"); a.e(f"s_lshl_b32 s{S_T}, s{S_T}, 2"); a.e(f"s_add_u32 s{S_T}, s{S_T}, s{S_J}")
    a.e(f"s_lshl_b32 s{S_T}, s{S_T}, 10"); a.e(f"s_add_u32 s{S_T}, s{S_T}, {WS_PB}")
    combine(4096, 2048, vZ, 12288, vT3, S_T)
    a.e(f"s_cmp_lg_u32 s{S_W}, 0")
    a.e("s_cbranch_scc1 ST_DONE")
    a.e(f"v_mov_b32 v{vZ}, 0")
    a.e(f"s_lshl_b32 s{S_T}, s{S_BH}, 10"); a.e(f"s_add_u32 s{S_T}, s{S_T}, {WS_PA}")
    combine(0, 512, vZ, 2048, vT2, S_T)
    a.label("ST_DONE")
    a.e("s_endpgm")
    return kernel_desc(name, r.p, 72)

def gen_oproj(a):
    name = "oproj_kernel"
    kernel_begin(a, name)
    prologue(a, "OP_DONE")
    r = Regs(2, 256)
    vT = r.alloc("t"); vK = r.alloc("k"); vWo = r.alloc("wo"); vSel0 = r.alloc("sel0"); vSel1 = r.alloc("sel1"); vYo = r.alloc("yo")
    vY = r.alloc("y", 2, 2); vOp = r.alloc("op", 4)
    vML = r.alloc("ml", 8, 2); vAl = r.alloc("al", 4); vSt = r.alloc("st", 2); vAd = r.alloc("ad", 2)
    vO = r.alloc("o", 32, 2)
    vW = r.alloc("w", 128, 2)
    srd(a, 52, S_WS, "0x300000")
    a.e(f"v_and_b32 v{vK}, 15, v0")
    a.e(f"v_lshlrev_b32 v{vK}, 3, v{vK}")
    a.e(f"v_lshlrev_b32 v{vWo}, 2, v0")
    a.e(f"v_mov_b32 v{vSel0}, 0x05040100")
    a.e(f"v_mov_b32 v{vSel1}, 0x07060302")
    a.e(f"v_lshrrev_b32 v{vT}, 3, v0")
    a.e(f"v_lshlrev_b32 v{vYo}, 11, v{vT}")
    a.e(f"v_and_b32 v{vT}, 7, v0")
    a.e(f"v_lshl_add_u32 v{vYo}, v{vT}, 3, v{vYo}")
    for br in range(2):
        srd(a, 48, S_BWO if br else S_AWO, "0x400000")
        a.e(f"s_lshl_b32 s12, s{S_H}, 17")
        a.e(f"s_lshl_b32 s13, s{S_W}, 8")
        a.e("s_add_u32 s12, s12, s13")
        for rr in range(128):
            off = (rr % 4) * 1024
            a.e(f"buffer_load_dword v{vW+rr}, v{vWo}, s[48:51], s12 offen" + (f" offset:{off}" if off else ""))
            if rr % 4 == 3:
                a.e("s_add_u32 s12, s12, 4096")
        np_ = 4 if br else 1
        if br:
            a.e(f"s_lshl_b32 s14, s{S_BH}, 12"); a.e(f"s_add_u32 s14, s14, {WS_PB}")
        else:
            a.e(f"s_lshl_b32 s14, s{S_BH}, 10"); a.e(f"s_add_u32 s14, s14, {WS_PA}")
        a.e(f"v_mov_b32 v{vT}, 0")
        for p in range(np_):
            a.e(f"buffer_load_dwordx2 {v(vML+2*p,2)}, v{vT}, s[52:55], s14 offen offset:{1024*p+512}")
            for rho in range(4):
                a.e(f"buffer_load_dwordx2 {v(vO+8*p+2*rho,2)}, v{vK}, s[52:55], s14 offen offset:{1024*p+128*rho}")
        a.e("s_waitcnt vmcnt(0)")
        for rp in range(64):
            a.e(f"v_perm_b32 v{vT}, v{vW+2*rp+1}, v{vW+2*rp}, v{vSel0}")
            a.e(f"v_perm_b32 v{vW+2*rp+1}, v{vW+2*rp+1}, v{vW+2*rp}, v{vSel1}")
            a.e(f"v_mov_b32 v{vW+2*rp}, v{vT}")
        if br:
            a.e(f"v_max3_f32 v{vSt}, v{vML}, v{vML+2}, v{vML+4}")
            a.e(f"v_max_f32 v{vSt}, v{vSt}, v{vML+6}")
            for w in range(4):
                a.e(f"v_sub_f32 v{vAl+w}, v{vML+2*w}, v{vSt}")
            for w in range(4):
                a.e(f"v_exp_f32 v{vAl+w}, v{vAl+w}")
            a.nop(1)
            a.e(f"v_mul_f32 v{vSt+1}, v{vAl}, v{vML+1}")
            for w in range(1, 4):
                a.e(f"v_fmac_f32 v{vSt+1}, v{vAl+w}, v{vML+2*w+1}")
            a.e(f"v_rcp_f32 v{vSt+1}, v{vSt+1}")
            a.nop(1)
            for w in range(4):
                a.e(f"v_mul_f32 v{vAl+w}, v{vAl+w}, v{vSt+1}")
            for rho in range(4):
                a.e(f"v_mul_f32 v{vAd}, v{vAl}, v{vO+2*rho}")
                a.e(f"v_mul_f32 v{vAd+1}, v{vAl}, v{vO+2*rho+1}")
                for w in range(1, 4):
                    a.e(f"v_fmac_f32 v{vAd}, v{vAl+w}, v{vO+8*w+2*rho}")
                    a.e(f"v_fmac_f32 v{vAd+1}, v{vAl+w}, v{vO+8*w+2*rho+1}")
                a.e(f"v_cvt_pk_bf16_f32 v{vOp+rho}, v{vAd}, v{vAd+1}")
        else:
            a.e(f"v_rcp_f32 v{vSt+1}, v{vML+1}")
            a.nop(1)
            for rho in range(4):
                a.e(f"v_mul_f32 v{vAd}, v{vSt+1}, v{vO+2*rho}")
                a.e(f"v_mul_f32 v{vAd+1}, v{vSt+1}, v{vO+2*rho+1}")
                a.e(f"v_cvt_pk_bf16_f32 v{vOp+rho}, v{vAd}, v{vAd+1}")
        a.e(f"v_mov_b32 v{vY}, 0"); a.e(f"v_mov_b32 v{vY+1}, 0")
        a.nop(1)
        for rp in range(64):
            rho, k = rp // 16, rp % 16
            a.e(f"v_dot2c_f32_bf16_dpp v{vY}, v{vOp+rho}, v{vW+2*rp} row_newbcast:{k} {DPPALL}")
            a.e(f"v_dot2c_f32_bf16_dpp v{vY+1}, v{vOp+rho}, v{vW+2*rp+1} row_newbcast:{k} {DPPALL}")
        a.nop(3)
        a.e(f"s_lshl_b32 s12, s{S_B}, 16"); a.e(f"s_lshl_b32 s13, s{S_W}, 14"); a.e("s_add_u32 s12, s12, s13")
        a.e(f"s_lshl_b32 s13, s{S_H}, 6"); a.e("s_add_u32 s12, s12, s13"); a.e(f"s_add_u32 s12, s12, {WS_YB if br else WS_YA}")
        a.e(f"buffer_store_dwordx2 {v(vY,2)}, v{vYo}, s[52:55], s12 offen")
        a.e("s_waitcnt vmcnt(0)")
    a.label("OP_DONE")
    a.e("s_endpgm")
    return kernel_desc(name, r.p, 64)

def gen_final(a):
    name = "final_kernel"
    kernel_begin(a, name)
    prologue(a, "FN_DONE")
    r = Regs(2, 256)
    vT = r.alloc("t"); vT2 = r.alloc("t2"); vOf = r.alloc("of"); vOo = r.alloc("oo")
    vD = r.alloc("d", 8, 4); vPk = r.alloc("pk", 2, 2)
    srd(a, 52, S_WS, "0x300000")
    srd(a, 48, S_OUT, 16384)
    a.e(f"v_lshlrev_b32 v{vOf}, 4, v0")
    a.e(f"v_lshlrev_b32 v{vOo}, 3, v0")
    for br in range(2):
        a.e(f"s_lshl_b32 s12, s{S_BH}, 11"); a.e(f"s_add_u32 s12, s12, {WS_YB if br else WS_YA}")
        a.e(f"buffer_load_dwordx4 {v(vD,4)}, v{vOf}, s[52:55], s12 offen")
        a.e(f"buffer_load_dwordx4 {v(vD+4,4)}, v{vOf}, s[52:55], s12 offen offset:1024")
        a.e("s_waitcnt vmcnt(0)")
        for i in range(4):
            a.e(f"v_add_f32 v{vD+i}, v{vD+i}, v{vD+4+i}")
        a.nop(1)
        for i in range(4):
            a.e(f"v_add_f32_dpp v{vD+i}, v{vD+i}, v{vD+i} row_ror:4 {DPPALL}")
        a.nop(1)
        for i in range(4):
            a.e(f"v_add_f32_dpp v{vD+i}, v{vD+i}, v{vD+i} row_ror:8 {DPPALL}")
        for i in range(4):
            xrow_reduce(a, "v_add_f32", vD + i, vT2)
        a.e(f"v_cvt_pk_bf16_f32 v{vPk}, v{vD}, v{vD+1}")
        a.e(f"v_cvt_pk_bf16_f32 v{vPk+1}, v{vD+2}, v{vD+3}")
        a.e(f"s_lshl_b32 s12, s{S_B}, 11"); a.e(f"s_lshl_b32 s13, s{S_H}, 5"); a.e("s_add_u32 s12, s12, s13")
        if br: a.e("s_add_u32 s12, s12, 1024")
        a.e("s_mov_b64 exec, 0xf")
        a.e(f"buffer_store_dwordx2 {v(vPk,2)}, v{vOo}, s[48:51], s12 offen")
        a.e("s_mov_b64 exec, -1")
        a.e("s_waitcnt vmcnt(0)")
    a.label("FN_DONE")
    a.e("s_endpgm")
    return kernel_desc(name, r.p, 64)

a = Asm()
hdr = HEADER + """; @launch kernel=qproj_kernel grid=(256,1,1) block=(256,1,1) lds=2048
; @launch kernel=stream_kernel grid=(256,1,1) block=(256,1,1) lds=16384
; @launch kernel=oproj_kernel grid=(256,1,1) block=(256,1,1) lds=0
; @launch kernel=final_kernel grid=(256,1,1) block=(64,1,1) lds=0
.amdgcn_target "amdgcn-amd-amdhsa--gfx950"
.text
"""
descs = [gen_qproj(a), gen_stream(a), gen_oproj(a), gen_final(a)]
open(sys.argv[1], "w").write(hdr + a.text() + "".join(descs))
```
